```python
import torch

def _softmax(x, axis=-1):
    return torch.softmax(x, dim=axis)

def _gelu(x):
    return torch.nn.functional.gelu(x, approximate='tanh')

def _silu(x):
    return torch.nn.functional.silu(x)

def _sigmoid(x):
    return torch.sigmoid(x)

def _layernorm(x, axis=-1, eps=1e-05):
    m = x.mean(dim=axis, keepdim=True)
    v = x.var(dim=axis, keepdim=True, unbiased=False)
    return (x - m) / torch.sqrt(v + eps)

def _scatter_add(tgt, idx, src, axis=0):
    return tgt.clone().index_add_(axis, idx, src)

def _segment_sum(src, seg, n):
    out = torch.zeros((n,) + src.shape[1:], dtype=src.dtype)
    return out.index_add_(0, seg, src)

def _pad(x, pw):
    flat = tuple((v for pair in reversed(pw) for v in pair))
    return torch.nn.functional.pad(x, flat)
kernel_name = 'sequential_preLN__memory_aug_recurrent_mem_tr__glu_gated_bilinear__prompt'

def setup_inputs():

    _w = lambda a: (lambda t: t.to(torch.bfloat16) if t.is_floating_point() else t)(torch.as_tensor(a))

    def _A_setup():
        B, S, Dm = (1, 2048, 448)
        H, Dh = (16, 256)
        M, seg = (8, 32)
        seg = min(seg, S)
        S = S // seg * seg
        return {'x': _w((lambda *s: torch.randn(*s, dtype=torch.bfloat16) * 0.05)(B, S, Dm)), 'mem0': _w((lambda *s: torch.randn(*s, dtype=torch.bfloat16) * 0.2)(B, M, Dm)), 'Wq': _w((lambda *s: torch.randn(*s, dtype=torch.bfloat16) * 1.6)(Dm, H, Dh) * Dm ** (-0.5)), 'Wk': _w((lambda *s: torch.randn(*s, dtype=torch.bfloat16) * 1.6)(Dm, H, Dh) * Dm ** (-0.5)), 'Wv': _w((lambda *s: torch.randn(*s, dtype=torch.bfloat16) * 0.2)(Dm, H, Dh) * Dm ** (-0.5)), 'Wo': _w((lambda *s: torch.randn(*s, dtype=torch.bfloat16) * 0.2)(H, Dh, Dm) * (H * Dh) ** (-0.5)), 'seg_len': seg}
    _A_in = _A_setup()

    def _B_setup():
        B, S, D, F = (1, 2048, 448, 1792)
        return {'x': _w((lambda *s: torch.randn(*s, dtype=torch.bfloat16) * 0.05)(B, S, D)), 'w_gate': _w((lambda *s: torch.randn(*s, dtype=torch.bfloat16) * 0.2)(D, F) * D ** (-0.5)), 'w_up': _w((lambda *s: torch.randn(*s, dtype=torch.bfloat16) * 0.2)(D, F) * D ** (-0.5)), 'w_down': _w((lambda *s: torch.randn(*s, dtype=torch.bfloat16) * 0.2)(F, D) * F ** (-0.5))}
    _B_in = _B_setup()
    return {'A_x': _A_in['x'], 'A_mem0': _A_in['mem0'], 'A_Wq': _A_in['Wq'], 'A_Wk': _A_in['Wk'], 'A_Wv': _A_in['Wv'], 'A_Wo': _A_in['Wo'], 'A_seg_len': _A_in['seg_len'], 'B_x': _B_in['x'], 'B_w_gate': _B_in['w_gate'], 'B_w_up': _B_in['w_up'], 'B_w_down': _B_in['w_down']}

def reference(A_x, A_mem0, A_Wq, A_Wk, A_Wv, A_Wo, A_seg_len, B_x, B_w_gate, B_w_up, B_w_down):

    def _A_ref(x, mem0, Wq, Wk, Wv, Wo, seg_len):
        B, S, Dm = x.shape
        H, Dh = (Wq.shape[1], Wq.shape[2])
        M = mem0.shape[1]
        scale = Dh ** (-0.5)
        n_seg = S // seg_len
        L = M + seg_len
        idx = torch.arange(L)
        mask = (idx[:, None] < M) | (idx[:, None] >= idx[None, :])
        mem = mem0
        outs = []
        for s in range(n_seg):
            xs = x[:, s * seg_len:(s + 1) * seg_len, :].clone()
            h = torch.concatenate([mem, xs], axis=1)
            q = torch.einsum('btd,dhe->bhte', h, Wq)
            k = torch.einsum('btd,dhe->bhte', h, Wk)
            v = torch.einsum('btd,dhe->bhte', h, Wv)
            scores = torch.einsum('bhqe,bhke->bhqk', q, k) * scale
            scores = torch.where(mask[None, None], scores, -1000000000.0)
            p = _softmax(scores, axis=-1)
            o = torch.einsum('bhqk,bhke->bhqe', p, v)
            o = torch.einsum('bhte,hed->btd', o, Wo)
            mem = o[:, :M, :].clone()
            outs.append(o[:, M:, :])
        return torch.concatenate(outs, axis=1)

    def _B_ref(x, w_gate, w_up, w_down):
        g = torch.einsum('bsd,df->bsf', x, w_gate)
        u = torch.einsum('bsd,df->bsf', x, w_up)
        h = g * u
        return torch.einsum('bsf,fd->bsd', h, w_down)
    x = A_x
    h = x + _A_ref(_layernorm(x, axis=-1), A_mem0, A_Wq, A_Wk, A_Wv, A_Wo, A_seg_len)
    h2 = h + _B_ref(_layernorm(h, axis=-1), B_w_gate, B_w_up, B_w_down)
    return h2
```

```python
NAME = "sequential_preLN__memory_aug_recurrent_mem_tr__glu_gated_bilinear__prompt"

KB = 1024
off = 0
def _alloc(n):
    global off
    o = off
    off += (n + 4095) // 4096 * 4096
    return o
WS_CTL  = _alloc(4096)
WS_XN   = _alloc(128*14*KB)
WS_WOT  = _alloc(16*28*8*KB)
WS_WG   = _alloc(112*14*KB)
WS_WU   = _alloc(112*14*KB)
WS_WD   = _alloc(28*56*KB)
WS_AF   = _alloc(16*28*14*KB)
WS_ATF  = _alloc(16*28*14*KB)
WS_BF   = _alloc(16*28*14*KB)
WS_DF   = _alloc(64*16*28*KB)
WS_MEMF = _alloc(65*7168 + 1024)
WS_SP   = WS_MEMF + 65*7168
off = WS_SP + 64*16*3*KB
off = (off + 4095)//4096*4096
WS_UF   = _alloc(64*4*28*KB)
WS_SXX  = _alloc(64*16*2*4*KB)
WS_G    = _alloc(16*32*14*KB)
WS_H    = _alloc(128*28*512)
WS_HN   = _alloc(128*14*KB)
WS_A2   = _alloc(128*56*KB)
WS_END  = off
FILL_START = WS_MEMF + 7168
FILL_BYTES = 64*7168 + 64*16*3*KB
assert FILL_BYTES % (64*KB) == 0, FILL_BYTES
assert WS_END < 256*1024*1024

KA = dict(x=0, mem0=8, Wq=16, Wk=24, Wv=32, Wo=40, seglen=48, Bx=56, wg=64, wu=72, wd=80, out=88, dbg=96, ws=104)

class Kern:
    def __init__(self, name, grid, block=256, lds=0, nvgpr=256, nagpr=0, nsgpr=100):
        self.name = name; self.grid = grid; self.block = block; self.lds = lds
        self.nvgpr = nvgpr; self.nagpr = nagpr; self.nsgpr = nsgpr
        self.L = []
        self._lab = 0
    def e(self, *lines):
        for s in lines:
            for t in s.split("\n"):
                t = t.strip()
                if t: self.L.append("    " + t)
    def lab(self, n): self.L.append(f"{n}:")
    def newlab(self, p="L"):
        self._lab += 1
        return f".{self.name}_{p}{self._lab}"
    def text(self):
        out = [f".globl {self.name}", ".p2align 8", f".type {self.name},@function", f"{self.name}:"]
        out += self.L
        return "\n".join(out) + "\n"
    def desc(self):
        acc = (self.nvgpr + 3)//4*4
        tot = acc + self.nagpr if self.nagpr else self.nvgpr
        return (f".amdhsa_kernel {self.name}\n"
                f"  .amdhsa_next_free_vgpr {tot}\n"
                f"  .amdhsa_next_free_sgpr {self.nsgpr}\n"
                f"  .amdhsa_accum_offset {acc}\n"
                f"  .amdhsa_group_segment_fixed_size 0\n"
                f"  .amdhsa_kernarg_size 112\n"
                f"  .amdhsa_user_sgpr_count 2\n"
                f"  .amdhsa_user_sgpr_kernarg_segment_ptr 1\n"
                f"  .amdhsa_system_sgpr_workgroup_id_x 1\n"
                f"  .amdhsa_float_denorm_mode_32 3\n"
                f"  .amdhsa_float_denorm_mode_16_64 3\n"
                f".end_amdhsa_kernel\n")
    def launch(self):
        return f"; @launch kernel={self.name} grid=({self.grid},1,1) block=({self.block},1,1) lds={self.lds}"

def vr(b, n=1):
    return f"v{b}" if n == 1 else f"v[{b}:{b+n-1}]"
def ar(b, n=1):
    return f"a{b}" if n == 1 else f"a[{b}:{b+n-1}]"
def sr(b, n=1):
    return f"s{b}" if n == 1 else f"s[{b}:{b+n-1}]"

def add64(k, sdst, ssrc, imm):
    k.e(f"s_add_u32 s{sdst}, s{ssrc}, {imm:#x}", f"s_addc_u32 s{sdst+1}, s{ssrc+1}, 0")
def add64s(k, sdst, ssrc, sreg):
    k.e(f"s_add_u32 s{sdst}, s{ssrc}, s{sreg}", f"s_addc_u32 s{sdst+1}, s{ssrc+1}, 0")

def lane_setup(k, v_lane, v_g, v_i, s_wave):
    k.e(f"v_lshrrev_b32 v{v_g}, 6, v0",
        f"v_and_b32 v{v_lane}, 63, v0",
        f"s_nop 0",
        f"v_readfirstlane_b32 s{s_wave}, v{v_g}",
        f"v_lshrrev_b32 v{v_g}, 4, v{v_lane}",
        f"v_and_b32 v{v_i}, 15, v{v_lane}")
```

```python
from common import *

def build():
    k = Kern("dgemm_kernel", grid=256, nvgpr=256, nagpr=256)
    Lend = k.newlab("end")
    k.e("s_cmp_ge_u32 s2, 256", f"s_cbranch_scc1 {Lend}")
    k.e(f"s_load_dwordx2 s[16:17], s[0:1], {KA['ws']}")
    lane_setup(k, 1, 2, 3, 18)
    k.e("s_lshr_b32 s20, s2, 4", "s_and_b32 s21, s2, 15", "v_lshlrev_b32 v4, 4, v1", "s_waitcnt lgkmcnt(0)")
    k.e("s_mul_i32 s22, s20, 28", "s_mul_i32 s23, s18, 7", "s_add_u32 s22, s22, s23", "s_mul_i32 s22, s22, 14336",
        f"s_add_u32 s22, s22, {WS_BF:#x}")
    add64s(k, 24, 16, 22)
    def wreg(n):
        return ar(n*4, 4) if n < 64 else vr(120 + (n-64)*4, 4)
    for n in range(98):
        if n and n % 4 == 0:
            k.e("s_add_u32 s24, s24, 4096", "s_addc_u32 s25, s25, 0")
        k.e(f"global_load_dwordx4 {wreg(n)}, v4, s[24:25] offset:{(n%4)*1024}")
    k.e("s_mul_i32 s22, s21, 8*14336", f"s_add_u32 s22, s22, {WS_XN:#x}")
    add64s(k, 26, 16, 22)
    k.e("s_lshl_b32 s22, s21, 6", "s_add_u32 s22, s22, s20", "s_mul_i32 s22, s22, 28", "s_add_u32 s22, s22, s23",
        "s_lshl_b32 s22, s22, 10", f"s_add_u32 s22, s22, {WS_DF:#x}")
    add64s(k, 28, 16, 22)
    k.e("v_add_u32 v5, 14336, v4", "s_mov_b32 s30, 4")
    XB = 8
    AC = 40
    Lloop = k.newlab("loop")
    k.lab(Lloop)
    def xl(ks):
        sl = ks % 4
        o = ks*1024
        b = "s[26:27]" if ks < 4 else ("s[32:33]" if ks < 8 else ("s[34:35]" if ks < 12 else "s[36:37]"))
        k.e(f"global_load_dwordx4 {vr(XB+sl*8,4)}, v4, {b} offset:{(ks%4)*1024}",
            f"global_load_dwordx4 {vr(XB+sl*8+4,4)}, v5, {b} offset:{(ks%4)*1024}")
    add64(k, 32, 26, 4096); add64(k, 34, 26, 8192); add64(k, 36, 26, 12288)
    for ks in range(3):
        xl(ks)
    for j in range(56):
        k.e(f"v_mov_b32 v{AC+j}, 0")
    for ks in range(14):
        if ks + 3 < 14:
            xl(ks+3)
        rem = min(13, ks+3) - ks
        k.e(f"s_waitcnt vmcnt({2*rem})")
        sl = ks % 4
        for c in range(7):
            for xt in range(2):
                a = AC + (c*2+xt)*4
                k.e(f"v_mfma_f32_16x16x32_bf16 {vr(a,4)}, {vr(XB+sl*8+4*xt,4)}, {wreg(c*14+ks)}, {vr(a,4)}")
    k.e("s_nop 7", "s_nop 1")
    add64(k, 38, 28, 4096)
    for c in range(7):
        a = AC + c*8
        p = 96 + (c % 2)*4
        k.e(f"v_cvt_pk_bf16_f32 v{p}, v{a}, v{a+1}", f"v_cvt_pk_bf16_f32 v{p+1}, v{a+2}, v{a+3}",
            f"v_cvt_pk_bf16_f32 v{p+2}, v{a+4}, v{a+5}", f"v_cvt_pk_bf16_f32 v{p+3}, v{a+6}, v{a+7}")
        b = "s[28:29]" if c < 4 else "s[38:39]"
        k.e(f"global_store_dwordx4 v4, {vr(p,4)}, {b} offset:{(c%4)*1024}")
    k.e("s_add_u32 s26, s26, 28672", "s_addc_u32 s27, s27, 0",
        f"s_add_u32 s28, s28, {16*28*1024}", "s_addc_u32 s29, s29, 0",
        "s_sub_u32 s30, s30, 1", "s_cmp_lg_u32 s30, 0", "s_waitcnt vmcnt(0)",
        f"s_cbranch_scc1 {Lloop}")
    k.lab(Lend)
    k.e("s_endpgm")
    return k
```

```python
from common import *

def build():
    k = Kern("fold_kernel", grid=336, nvgpr=160)
    Lend = k.newlab("end")
    k.e("s_cmp_ge_u32 s2, 336", f"s_cbranch_scc1 {Lend}")
    k.e(f"s_load_dwordx4 s[4:7], s[0:1], {KA['Wq']}",
        f"s_load_dwordx2 s[8:9], s[0:1], {KA['Wv']}",
        f"s_load_dwordx2 s[16:17], s[0:1], {KA['ws']}")
    lane_setup(k, 1, 2, 3, 18)
    k.e("s_mul_i32 s20, s2, 0x2493", "s_lshr_b32 s20, s20, 16",
        "s_mul_i32 s21, s20, 7", "s_sub_u32 s21, s2, s21",
        "s_lshr_b32 s22, s20, 4",
        "s_and_b32 s23, s20, 15",
        "s_lshl_b32 s21, s21, 1", "s_lshr_b32 s24, s18, 1", "s_add_u32 s21, s21, s24",
        "s_and_b32 s24, s18, 1",
        "s_waitcnt lgkmcnt(0)")
    k.e("s_cmp_eq_u32 s22, 1", "s_cselect_b32 s26, s6, s4", "s_cselect_b32 s27, s7, s5",
        "s_cmp_eq_u32 s22, 2", "s_cselect_b32 s26, s8, s26", "s_cselect_b32 s27, s9, s27",
        "s_lshl_b32 s25, s21, 18", "s_lshl_b32 s28, s23, 9", "s_add_u32 s25, s25, s28")
    add64s(k, 26, 26, 25)
    k.e("v_lshlrev_b32 v4, 13, v3", "v_lshl_add_u32 v4, v2, 4, v4")
    H = 16
    for t in range(2):
        if t == 1:
            k.e("s_add_u32 s26, s26, 131072", "s_addc_u32 s27, s27, 0")
        for ks in range(8):
            k.e(f"global_load_dwordx4 {vr(H+(t*8+ks)*4,4)}, v4, s[26:27] offset:{ks*64}")
    Lt2, Lgo = k.newlab("t2"), k.newlab("go")
    k.e("s_cmp_eq_u32 s22, 2", f"s_cbranch_scc1 {Lt2}")
    k.e("s_cmp_eq_u32 s22, 1", "s_cselect_b32 s30, s4, s6", "s_cselect_b32 s31, s5, s7",
        "s_mul_i32 s25, s24, 14*131072", "s_add_u32 s25, s25, s28",
        "s_mov_b32 s32, 131072")
    add64s(k, 30, 30, 25)
    for ks in range(8):
        k.e(f"v_add_u32 v{8+ks}, {ks*64}, v4")
    k.e(f"s_branch {Lgo}")
    k.lab(Lt2)
    k.e("s_mul_i32 s25, s23, 28", "s_mul_i32 s29, s24, 14", "s_add_u32 s25, s25, s29", "s_lshl_b32 s25, s25, 13",
        f"s_add_u32 s25, s25, {WS_WOT:#x}", "s_movk_i32 s32, 8192")
    add64s(k, 30, 16, 25)
    k.e("v_lshlrev_b32 v5, 4, v1")
    for ks in range(8):
        k.e(f"v_add_u32 v{8+ks}, {ks*1024}, v5")
    k.lab(Lgo)
    assert WS_ATF - WS_AF == WS_BF - WS_ATF
    k.e(f"s_mul_i32 s25, s22, {WS_ATF-WS_AF}", f"s_add_u32 s25, s25, {WS_AF:#x}",
        "s_mul_i32 s29, s23, 28", "s_mul_i32 s33, s24, 14", "s_add_u32 s29, s29, s33", "s_mul_i32 s29, s29, 14",
        "s_add_u32 s29, s29, s21", "s_lshl_b32 s29, s29, 10", "s_add_u32 s25, s25, s29")
    add64s(k, 34, 16, 25)
    k.e("v_lshlrev_b32 v5, 4, v1", "s_mov_b32 s36, 14")
    S = 80
    A = 112
    Lloop = k.newlab("loop")
    k.lab(Lloop)
    for ks in range(8):
        k.e(f"global_load_dwordx4 {vr(S+ks*4,4)}, v{8+ks}, s[30:31]")
    for j in range(8):
        k.e(f"v_mov_b32 v{A+j}, 0")
    k.e("s_add_u32 s30, s30, s32", "s_addc_u32 s31, s31, 0")
    for ks in range(8):
        k.e(f"s_waitcnt vmcnt({7-ks})")
        for t in range(2):
            k.e(f"v_mfma_f32_16x16x32_bf16 {vr(A+4*t,4)}, {vr(H+(t*8+ks)*4,4)}, {vr(S+ks*4,4)}, {vr(A+4*t,4)}")
    k.e("s_nop 7", "s_nop 1")
    k.e(f"v_cvt_pk_bf16_f32 v120, v{A}, v{A+1}", f"v_cvt_pk_bf16_f32 v121, v{A+2}, v{A+3}",
        f"v_cvt_pk_bf16_f32 v122, v{A+4}, v{A+5}", f"v_cvt_pk_bf16_f32 v123, v{A+6}, v{A+7}",
        "global_store_dwordx4 v5, v[120:123], s[34:35]",
        "s_add_u32 s34, s34, 14336", "s_addc_u32 s35, s35, 0",
        "s_sub_u32 s36, s36, 1", "s_cmp_lg_u32 s36, 0",
        "s_waitcnt vmcnt(0)",
        f"s_cbranch_scc1 {Lloop}")
    k.lab(Lend)
    k.e("s_endpgm")
    return k
```

```python
from common import *

def xg_reduce_add(k, v, t):
    k.e(f"v_mov_b32 v{t}, v{v}", "s_nop 1",
        f"v_permlane32_swap_b32 v{v}, v{t}", "s_nop 1",
        f"v_add_f32 v{v}, v{v}, v{t}",
        f"v_mov_b32 v{t}, v{v}", "s_nop 1",
        f"v_permlane16_swap_b32 v{v}, v{t}", "s_nop 1",
        f"v_add_f32 v{v}, v{v}, v{t}")

def bf16_round(k, v):
    k.e(f"v_cvt_pk_bf16_f32 v{v}, v{v}, v{v}",
        f"v_lshlrev_b32 v{v}, 16, v{v}")

def ln_rows(k, X, n, vm, vt, vs, vr_, ve):
    k.e(f"v_add_f32 v{vm}, v{X}, v{X+1}")
    for j in range(2, n):
        k.e(f"v_add_f32 v{vm}, v{vm}, v{X+j}")
    xg_reduce_add(k, vm, vt)
    k.e(f"v_mul_f32 v{vm}, 0x3b124925, v{vm}")
    k.e(f"v_sub_f32 v{vt}, v{X}, v{vm}", f"v_mul_f32 v{vs}, v{vt}, v{vt}")
    for j in range(1, n):
        k.e(f"v_sub_f32 v{vt}, v{X+j}, v{vm}", f"v_fmac_f32 v{vs}, v{vt}, v{vt}")
    xg_reduce_add(k, vs, vt)
    k.e(f"v_mul_f32 v{vs}, 0x3b124925, v{vs}")
    bf16_round(k, vs)
    bf16_round(k, vm)
    k.e(f"v_add_f32 v{vs}, 0x3727c5ac, v{vs}")
    bf16_round(k, vs)
    k.e(f"v_sqrt_f32 v{vs}, v{vs}", "s_nop 0")
    bf16_round(k, vs)
    k.e(f"v_rcp_f32 v{vr_}, v{vs}", "s_nop 0")
    for j in range(n):
        x = X + j
        k.e(f"v_sub_f32 v{x}, v{x}, v{vm}")
        bf16_round(k, x)
        k.e(f"v_mul_f32 v{vt}, v{x}, v{vr_}",
            f"v_fma_f32 v{ve}, -v{vt}, v{vs}, v{x}",
            f"v_fma_f32 v{x}, v{ve}, v{vr_}, v{vt}")

def build():
    k = Kern("prep_kernel", grid=368, nvgpr=200)
    Lend = k.newlab("end")
    k.e("s_cmp_ge_u32 s2, 368", f"s_cbranch_scc1 {Lend}")
    k.e(f"s_load_dwordx4 s[4:7], s[0:1], {KA['x']}",
        f"s_load_dwordx2 s[8:9], s[0:1], {KA['Wo']}",
        f"s_load_dwordx4 s[12:15], s[0:1], {KA['wg']}",
        f"s_load_dwordx2 s[10:11], s[0:1], {KA['wd']}",
        f"s_load_dwordx2 s[16:17], s[0:1], {KA['ws']}")
    lane_setup(k, 1, 2, 3, 18)
    k.e("s_waitcnt lgkmcnt(0)")
    Lln, Ltr, Lfill, Lmisc = k.newlab("ln"), k.newlab("tr"), k.newlab("fill"), k.newlab("misc")
    Lwot, Lwg, Lwu, Lwd = k.newlab("wot"), k.newlab("wg"), k.newlab("wu"), k.newlab("wd")
    k.e("s_cmp_lt_u32 s2, 32", f"s_cbranch_scc1 {Lln}",
        "s_cmp_lt_u32 s2, 144", f"s_cbranch_scc1 {Lwot}",
        "s_cmp_lt_u32 s2, 200", f"s_cbranch_scc1 {Lwg}",
        "s_cmp_lt_u32 s2, 256", f"s_cbranch_scc1 {Lwu}",
        "s_cmp_lt_u32 s2, 312", f"s_cbranch_scc1 {Lwd}",
        "s_cmp_lt_u32 s2, 367", f"s_cbranch_scc1 {Lfill}",
        f"s_branch {Lmisc}")
    k.lab(Lln)
    k.e("s_lshl_b32 s19, s2, 2", "s_add_u32 s19, s19, s18",
        "s_mul_i32 s20, s19, 14336",
        "v_mul_u32_u24 v4, 896, v3",
        "v_lshlrev_b32 v5, 3, v2",
        "v_add3_u32 v4, v4, v5, s20")
    P = 10
    for ks in range(14):
        k.e(f"global_load_dwordx2 {vr(P+4*ks,2)}, v4, s[4:5] offset:{ks*64}",
            f"global_load_dwordx2 {vr(P+4*ks+2,2)}, v4, s[4:5] offset:{ks*64+32}")
    X = 70
    k.e("s_waitcnt vmcnt(0)")
    for j in range(56):
        k.e(f"v_lshlrev_b32 v{X+2*j}, 16, v{P+j}", f"v_and_b32 v{X+2*j+1}, 0xffff0000, v{P+j}")
    ln_rows(k, X, 112, 5, 6, 7, 8, 9)
    for j in range(56):
        k.e(f"v_cvt_pk_bf16_f32 v{P+j}, v{X+2*j}, v{X+2*j+1}")
    k.e("s_mul_i32 s20, s19, 14336", f"s_add_u32 s20, s20, {WS_XN:#x}")
    add64s(k, 22, 16, 20)
    k.e("v_lshlrev_b32 v4, 4, v1")
    for ks in range(14):
        if ks == 4 or ks == 8 or ks == 12:
            k.e("s_add_u32 s22, s22, 4096", "s_addc_u32 s23, s23, 0")
        k.e(f"global_store_dwordx4 v4, {vr(P+4*ks,4)}, s[22:23] offset:{(ks%4)*1024}")
    k.e(f"s_branch {Lend}")
    k.lab(Lwot)
    k.e("s_sub_u32 s30, s2, 32",
        "s_mul_i32 s31, s30, 0x2493", "s_lshr_b32 s31, s31, 16",
        "s_mul_i32 s32, s31, 7", "s_sub_u32 s32, s30, s32",
        "s_lshl_b32 s32, s32, 2", "s_add_u32 s32, s32, s18",
        "s_mul_i32 s33, s31, 229376")
    add64s(k, 20, 8, 33)
    k.e("s_movk_i32 s22, 896", "s_mov_b32 s23, 0", "s_lshl_b32 s24, s32, 4", "s_mov_b32 s25, 0",
        "s_mul_i32 s33, s31, 28", "s_add_u32 s33, s33, s32", "s_lshl_b32 s33, s33, 13",
        f"s_add_u32 s33, s33, {WS_WOT:#x}", "s_mov_b32 s28, 8")
    add64s(k, 26, 16, 33)
    k.e(f"s_branch {Ltr}")
    for (lab, start, sbase, wsoff) in ((Lwg, 144, 12, WS_WG), (Lwu, 200, 14, WS_WU)):
        k.lab(lab)
        k.e(f"s_sub_u32 s30, s2, {start}",
            "s_lshl_b32 s30, s30, 1", "s_lshr_b32 s31, s18, 1", "s_add_u32 s30, s30, s31",
            "s_and_b32 s31, s18, 1", "s_mul_i32 s31, s31, 7",
            f"s_mov_b32 s20, s{sbase}", f"s_mov_b32 s21, s{sbase+1}",
            "s_movk_i32 s22, 3584", "s_lshl_b32 s23, s31, 5", "s_lshl_b32 s24, s30, 4", "s_mov_b32 s25, 1",
            "s_mul_i32 s33, s30, 14", "s_add_u32 s33, s33, s31", "s_lshl_b32 s33, s33, 10",
            f"s_add_u32 s33, s33, {wsoff:#x}", "s_mov_b32 s28, 7")
        add64s(k, 26, 16, 33)
        k.e(f"s_branch {Ltr}")
    k.lab(Lwd)
    k.e("s_sub_u32 s30, s2, 256",
        "s_lshr_b32 s32, s30, 1", "s_and_b32 s31, s30, 1", "s_mul_i32 s31, s31, 28",
        "s_mul_i32 s33, s18, 7", "s_add_u32 s31, s31, s33",
        "s_mov_b32 s20, s10", "s_mov_b32 s21, s11",
        "s_movk_i32 s22, 896", "s_lshl_b32 s23, s31, 5", "s_lshl_b32 s24, s32, 4", "s_mov_b32 s25, 1",
        "s_mul_i32 s33, s32, 56", "s_add_u32 s33, s33, s31", "s_lshl_b32 s33, s33, 10",
        f"s_add_u32 s33, s33, {WS_WD:#x}", "s_mov_b32 s28, 7")
    add64s(k, 26, 16, 33)
    k.lab(Ltr)
    k.e("s_cmp_eq_u32 s25, 1", "s_cselect_b32 s30, 4, 8", "s_cselect_b32 s31, 12, 0",
        "s_mul_i32 s31, s31, s22",
        "v_mul_lo_u32 v10, v2, s30", "v_add_u32 v10, s23, v10", "v_mul_lo_u32 v10, v10, s22",
        "v_add_u32 v11, s24, v3", "v_lshl_add_u32 v11, v11, 1, v10")
    for e in range(1, 8):
        k.e(f"v_add_u32 v{11+e}, s22, v{10+e}")
        if e == 4:
            k.e(f"v_add_u32 v{11+e}, s31, v{11+e}")
    k.e("v_lshlrev_b32 v4, 4, v1", "s_lshl_b32 s32, s22, 5")
    Lloop = k.newlab("trl")
    k.lab(Lloop)
    for e in range(8):
        k.e(f"global_load_ushort v{24+e}, v{11+e}, s[20:21]")
    k.e("s_add_u32 s20, s20, s32", "s_addc_u32 s21, s21, 0",
        "s_waitcnt vmcnt(0)")
    for j in range(4):
        k.e(f"v_lshl_or_b32 v{20+j}, v{25+2*j}, 16, v{24+2*j}")
    k.e("global_store_dwordx4 v4, v[20:23], s[26:27]",
        "s_add_u32 s26, s26, 1024", "s_addc_u32 s27, s27, 0",
        "s_sub_u32 s28, s28, 1", "s_cmp_lg_u32 s28, 0",
        "s_waitcnt vmcnt(0)",
        f"s_cbranch_scc1 {Lloop}", f"s_branch {Lend}")
    k.lab(Lfill)
    k.e("s_sub_u32 s30, s2, 312", "s_lshl_b32 s30, s30, 16", "s_lshl_b32 s31, s18, 14", "s_add_u32 s30, s30, s31",
        f"s_add_u32 s30, s30, {FILL_START:#x}")
    add64s(k, 26, 16, 30)
    k.e("v_lshlrev_b32 v4, 4, v1", "v_mov_b32 v20, -1", "v_mov_b32 v21, -1", "v_mov_b32 v22, -1", "v_mov_b32 v23, -1")
    for j in range(16):
        if j and j % 4 == 0:
            k.e("s_add_u32 s26, s26, 4096", "s_addc_u32 s27, s27, 0")
        k.e(f"global_store_dwordx4 v4, v[20:23], s[26:27] offset:{(j%4)*1024}")
    k.e(f"s_branch {Lend}")
    k.lab(Lmisc)
    Lctl = k.newlab("ctl")
    k.e("s_cmp_eq_u32 s18, 1", f"s_cbranch_scc1 {Lctl}",
        "s_cmp_lg_u32 s18, 0", f"s_cbranch_scc1 {Lend}")
    k.e("v_mul_u32_u24 v4, 896, v3", "v_lshl_add_u32 v4, v2, 3, v4",
        "v_lshl_add_u32 v5, v2, 3, v3", "v_lshlrev_b32 v5, 4, v5",
        "v_cmp_gt_u32 vcc, 8, v3", "s_and_saveexec_b64 s[30:31], vcc")
    add64(k, 26, 16, WS_MEMF)
    for ks in range(14):
        k.e(f"global_load_dwordx2 {vr(10+4*ks,2)}, v4, s[6:7] offset:{ks*64}",
            f"global_load_dwordx2 {vr(12+4*ks,2)}, v4, s[6:7] offset:{ks*64+32}")
    k.e("s_waitcnt vmcnt(0)")
    for ks in range(14):
        if ks == 8:
            k.e("s_add_u32 s26, s26, 4096", "s_addc_u32 s27, s27, 0")
        k.e(f"global_store_dwordx4 v5, {vr(10+4*ks,4)}, s[26:27] offset:{(ks%8)*512}")
    k.e("s_mov_b64 exec, s[30:31]", f"s_branch {Lend}")
    k.lab(Lctl)
    add64(k, 26, 16, WS_CTL)
    k.e("v_lshlrev_b32 v4, 2, v1", "v_mov_b32 v5, 0", "global_store_dword v4, v5, s[26:27]")
    k.lab(Lend)
    k.e("s_endpgm")
    return k
```

```python
import sys, importlib
from common import *
import k_prep, k_fold, k_dgemm
mods = ["k_prep", "k_fold", "k_dgemm"]
if len(sys.argv) > 2: mods = sys.argv[2].split(",")
kerns = [importlib.import_module(m).build() for m in mods]
hdr = open("cdna_kernels/" + NAME + ".s.ref").read().split("\n")
hdr = [l for l in hdr if l.startswith(";") and "@launch" not in l]
out = "\n".join(hdr) + "\n" + "\n".join(k.launch() for k in kerns) + "\n"
out += '.amdgcn_target "amdgcn-amd-amdhsa--gfx950"\n.text\n'
for k in kerns: out += k.text()
out += '.section .rodata,"a"\n'
for k in kerns: out += ".p2align 6\n" + k.desc()
dst = sys.argv[1] if len(sys.argv) > 1 else "cdna_kernels/" + NAME + ".s"
open(dst, "w").write(out)
print("wrote", dst, len(out), "bytes")
```
